```python
import torch

def _softmax(x, axis=-1):
    return torch.softmax(x, dim=axis)
def _gelu(x):
    return torch.nn.functional.gelu(x, approximate="tanh")
def _silu(x):
    return torch.nn.functional.silu(x)
def _sigmoid(x):
    return torch.sigmoid(x)
def _layernorm(x, axis=-1, eps=1e-5):
    m = x.mean(dim=axis, keepdim=True)
    v = x.var(dim=axis, keepdim=True, unbiased=False)
    return (x - m) / torch.sqrt(v + eps)
def _scatter_add(tgt, idx, src, axis=0):
    return tgt.clone().index_add_(axis, idx, src)
def _segment_sum(src, seg, n):
    out = torch.zeros((n,) + src.shape[1:], dtype=src.dtype)
    return out.index_add_(0, seg, src)
def _pad(x, pw):
    flat = tuple(v for pair in reversed(pw) for v in pair)
    return torch.nn.functional.pad(x, flat)

kernel_name = 'concat_heads__ssm_conv_h3__ssm_conv_h3__prompt'

def setup_inputs():

    _w = (lambda a: (lambda t: t.to(torch.bfloat16) if t.is_floating_point() else t)(torch.as_tensor(a)))
    def _A_setup():
        B, S, D = 1, 2048, 576
        ks = 4
        return {
            "q": _w((lambda *s: torch.randn(*s, dtype=torch.bfloat16) * 0.05)(B, S, D)),
            "k": _w((lambda *s: torch.randn(*s, dtype=torch.bfloat16) * 0.05)(B, S, D)),
            "v": _w((lambda *s: torch.randn(*s, dtype=torch.bfloat16) * 0.05)(B, S, D)),
            "shift_k": _w((lambda *s: torch.randn(*s, dtype=torch.bfloat16) * 0.05)(D, ks) * 0.5),
            "ssm_k": _w((lambda *s: torch.randn(*s, dtype=torch.bfloat16) * 0.05)(D, S) * (1.0 / S ** 0.5)),
            "ssm_D": _w((lambda *s: torch.randn(*s, dtype=torch.bfloat16) * 0.05)(D)),
        }
    _A_in = _A_setup()

    def _B_setup():
        B, S, D = 1, 2048, 576
        ks = 4
        return {
            "q": _w((lambda *s: torch.randn(*s, dtype=torch.bfloat16) * 0.05)(B, S, D)),
            "k": _w((lambda *s: torch.randn(*s, dtype=torch.bfloat16) * 0.05)(B, S, D)),
            "v": _w((lambda *s: torch.randn(*s, dtype=torch.bfloat16) * 0.05)(B, S, D)),
            "shift_k": _w((lambda *s: torch.randn(*s, dtype=torch.bfloat16) * 0.05)(D, ks) * 0.5),
            "ssm_k": _w((lambda *s: torch.randn(*s, dtype=torch.bfloat16) * 0.05)(D, S) * (1.0 / S ** 0.5)),
            "ssm_D": _w((lambda *s: torch.randn(*s, dtype=torch.bfloat16) * 0.05)(D)),
        }
    _B_in = _B_setup()

    return {
        "A_q": _A_in["q"],
        "A_k": _A_in["k"],
        "A_v": _A_in["v"],
        "A_shift_k": _A_in["shift_k"],
        "A_ssm_k": _A_in["ssm_k"],
        "A_ssm_D": _A_in["ssm_D"],
        "B_q": _B_in["q"],
        "B_k": _B_in["k"],
        "B_v": _B_in["v"],
        "B_shift_k": _B_in["shift_k"],
        "B_ssm_k": _B_in["ssm_k"],
        "B_ssm_D": _B_in["ssm_D"],
    }

def reference(A_q, A_k, A_v, A_shift_k, A_ssm_k, A_ssm_D, B_q, B_k, B_v, B_shift_k, B_ssm_k, B_ssm_D):
    def _A_ref(q, k, v, shift_k, ssm_k, ssm_D):
        B, S, D = q.shape
        ks = shift_k.shape[-1]
        k_pad = _pad(k, ((0, 0), (ks - 1, 0), (0, 0)))
        k_shift = torch.zeros_like(k)
        for t in range(ks):
            k_shift = k_shift + k_pad[:, t:t + S, :] * shift_k[:, ks - 1 - t][None, None, :]
        kv = k_shift * v
        L = 2 * S
        kv_pad = _pad(kv, ((0, 0), (0, S), (0, 0)))
        kf_pad = _pad(ssm_k, ((0, 0), (0, S)))
        kv_f = (lambda x, axes=(-2,-1): torch.fft.rfft2(x.float(), dim=axes))(kv_pad[:, None, :, :], axes=(1, 2))
        kf_f = (lambda x, axes=(-2,-1): torch.fft.rfft2(x.float(), dim=axes))(kf_pad[:, None, :], axes=(1, 2))
        kf_f = (lambda x, *d: x.permute(*d))(kf_f, 1, 2, 0)
        y_f = kv_f * kf_f[None, :, :, :]
        y = (lambda x, s, axes=(-2,-1): torch.fft.irfft2(x, s=s, dim=axes).to(torch.bfloat16))(y_f, (1, L), axes=(1, 2))[:, 0, :S, :]
        y = y + kv * ssm_D[None, None, :]
        return q * y

    def _B_ref(q, k, v, shift_k, ssm_k, ssm_D):
        B, S, D = q.shape
        ks = shift_k.shape[-1]
        k_pad = _pad(k, ((0, 0), (ks - 1, 0), (0, 0)))
        k_shift = torch.zeros_like(k)
        for t in range(ks):
            k_shift = k_shift + k_pad[:, t:t + S, :] * shift_k[:, ks - 1 - t][None, None, :]
        kv = k_shift * v
        L = 2 * S
        kv_pad = _pad(kv, ((0, 0), (0, S), (0, 0)))
        kf_pad = _pad(ssm_k, ((0, 0), (0, S)))
        kv_f = (lambda x, axes=(-2,-1): torch.fft.rfft2(x.float(), dim=axes))(kv_pad[:, None, :, :], axes=(1, 2))
        kf_f = (lambda x, axes=(-2,-1): torch.fft.rfft2(x.float(), dim=axes))(kf_pad[:, None, :], axes=(1, 2))
        kf_f = (lambda x, *d: x.permute(*d))(kf_f, 1, 2, 0)
        y_f = kv_f * kf_f[None, :, :, :]
        y = (lambda x, s, axes=(-2,-1): torch.fft.irfft2(x, s=s, dim=axes).to(torch.bfloat16))(y_f, (1, L), axes=(1, 2))[:, 0, :S, :]
        y = y + kv * ssm_D[None, None, :]
        return q * y

    a = _A_ref(A_q, A_k, A_v, A_shift_k, A_ssm_k, A_ssm_D)
    b = _B_ref(B_q, B_k, B_v, B_shift_k, B_ssm_k, B_ssm_D)
    return torch.concatenate([a, b], axis=-1)
```

```python
HEADER = open('concat_heads__ssm_conv_h3__ssm_conv_h3__prompt.s.ref').read().split('; Override launch')[0]

class Asm:
    def __init__(self):
        self.l = []
    def __call__(self, s):
        for x in s.split('\n'):
            x = x.strip()
            if x: self.l.append('    ' + x)
    def label(self, n): self.l.append(n + ':')
    def raw(self, s): self.l.append(s)
    def c(self, s): self.l.append('    ; ' + s)
    def text(self): return '\n'.join(self.l) + '\n'

def v(i, n=1): return f'v{i}' if n == 1 else f'v[{i}:{i+n-1}]'
def s(i, n=1): return f's{i}' if n == 1 else f's[{i}:{i+n-1}]'
def a(i, n=1): return f'a{i}' if n == 1 else f'a[{i}:{i+n-1}]'

def kernel_begin(A, name):
    A.raw(f'.globl {name}')
    A.raw('.p2align 8')
    A.raw(f'.type {name},@function')
    A.label(name)

def kernel_desc(name, vgpr, sgpr=102, accum=None):
    if accum is None: accum = (vgpr + 3)//4*4
    return f'''.p2align 6
.amdhsa_kernel {name}
  .amdhsa_next_free_vgpr {vgpr}
  .amdhsa_next_free_sgpr {sgpr}
  .amdhsa_accum_offset {accum}
  .amdhsa_group_segment_fixed_size 0
  .amdhsa_kernarg_size 120
  .amdhsa_user_sgpr_count 2
  .amdhsa_user_sgpr_kernarg_segment_ptr 1
  .amdhsa_system_sgpr_workgroup_id_x 1
.end_amdhsa_kernel
'''

def srd(A, d, base, nbytes):
    if d != base:
        A(f's_mov_b32 s{d}, s{base}')
        A(f's_mov_b32 s{d+1}, s{base+1}')
    A(f's_mov_b32 s{d+2}, {nbytes}')
    A(f's_mov_b32 s{d+3}, 0x00020000')
```

```python
import sys
from asmlib import *
TB = 2359296
XOFF = 0
YOFF = 8 << 20
XB = 1152*4096
A = Asm()
A.raw(HEADER.rstrip())
A.raw('; @launch kernel=kv_kernel grid=(144,1,1) block=(256,1,1) lds=0')
A.raw('; @launch kernel=conv_kernel grid=(288,1,1) block=(256,1,1) lds=52224')
A.raw('; @launch kernel=gate_kernel grid=(144,1,1) block=(256,1,1) lds=0')
A.raw('.amdgcn_target "amdgcn-amd-amdhsa--gfx950"')
A.raw('.text')

def tile_decode(A):
    A('v_lshrrev_b32 v1, 6, v0')
    A('s_nop 0')
    A('v_readfirstlane_b32 s3, v1')
    A('v_and_b32 v0, 63, v0')
    A('s_lshl_b32 s4, s2, 2')
    A('s_add_u32 s3, s3, s4')
    A('s_mul_i32 s4, s3, 3641')
    A('s_lshr_b32 s4, s4, 16')
    A('s_mul_i32 s5, s4, 18')
    A('s_sub_u32 s5, s3, s5')
    A('s_cmp_ge_u32 s5, 9')
    A('s_cselect_b32 s6, 1, 0')
    A('s_mul_i32 s7, s6, 9')
    A('s_sub_u32 s7, s5, s7')

def unpack(A, dst, src, half):
    if half == 0: A(f'v_lshlrev_b32 v{dst}, 16, v{src}')
    else: A(f'v_and_b32 v{dst}, 0xffff0000, v{src}')

kernel_begin(A, 'kv_kernel')
A('s_cmp_ge_u32 s2, 144')
A('s_cbranch_scc1 kv_done')
tile_decode(A)
A('s_mul_i32 s8, s6, 48')
A('s_add_u32 s10, s0, s8')
A('s_addc_u32 s11, s1, 0')
A('s_load_dwordx4 s[12:15], s[10:11], 8')
A('s_load_dwordx2 s[16:17], s[10:11], 24')
A('s_load_dwordx2 s[18:19], s[0:1], 112')
A('v_and_b32 v1, 15, v0')
A('v_lshrrev_b32 v2, 4, v0')
A('s_lshl_b32 s8, s4, 6')
A('v_lshl_add_u32 v3, v2, 4, s8')
A('s_movk_i32 s9, 1152')
A('v_mul_lo_u32 v4, v3, s9')
A('s_lshl_b32 s8, s7, 7')
A('v_lshl_add_u32 v5, v1, 3, s8')
A('v_add_u32 v4, v4, v5')
A('v_subrev_u32 v6, 3456, v4')
A('v_lshlrev_b32 v7, 2, v5')
A('s_mul_i32 s8, s5, 64*4096')
A('v_lshl_add_u32 v8, v1, 14, s8')
A('v_add_u32 v8, 2032, v8')
A('v_sub_u32 v8, v8, v3')
A('s_waitcnt lgkmcnt(0)')
srd(A, 20, 12, TB); srd(A, 24, 14, TB); srd(A, 28, 16, 576*8); srd(A, 32, 18, XB)
for q in range(4):
    A(f's_mov_b32 s{36+q}, {4608*q}')
    A(f's_mov_b32 s{40+q}, {4096*q}')
K0, V0, WR, WF, KF, R, P = 10, 48, 80, 88, 104, 124, 140
A(f'buffer_load_dwordx4 v[{WR}:{WR+3}], v7, s[28:31], 0 offen')
A(f'buffer_load_dwordx4 v[{WR+4}:{WR+7}], v7, s[28:31], 0 offen offset:16')
for i in range(3):
    A(f'buffer_load_dwordx2 v[{K0+2*i}:{K0+2*i+1}], v6, s[20:23], 0 offen offset:{1152*i}')
for i in range(16):
    A(f'buffer_load_dwordx2 v[{K0+6+2*i}:{K0+7+2*i}], v4, s[20:23], s{36+i//4} offen offset:{1152*(i%4)}')
    A(f'buffer_load_dwordx2 v[{V0+2*i}:{V0+1+2*i}], v4, s[24:27], s{36+i//4} offen offset:{1152*(i%4)}')
A('s_waitcnt vmcnt(0)')
for j in range(4):
    for t in range(4):
        unpack(A, WF+4*j+t, WR+2*j+t//2, t % 2)
for j in range(4):
    d, h = j//2, j % 2
    for i in range(19): unpack(A, KF+i, K0+2*i+d, h)
    for i in range(16):
        A(f'v_mul_f32 v{R+i}, v{WF+4*j+3}, v{KF+i}')
        A(f'v_fmac_f32 v{R+i}, v{WF+4*j+2}, v{KF+i+1}')
        A(f'v_fmac_f32 v{R+i}, v{WF+4*j+1}, v{KF+i+2}')
        A(f'v_fmac_f32 v{R+i}, v{WF+4*j+0}, v{KF+i+3}')
        unpack(A, 9, V0+2*i+d, h)
        A(f'v_mul_f32 v{R+i}, v{R+i}, v9')
    PP = P + 8*j
    for ph in range(2):
        for p in range(4):
            A(f'v_cvt_pk_bf16_f32 v{PP+4*ph+p}, v{R+14-4*p+ph}, v{R+12-4*p+ph}')
        A(f'buffer_store_dwordx4 v[{PP+4*ph}:{PP+4*ph+3}], v8, s[32:35], s{40+j} offen offset:{2048*ph}')
A.label('kv_done')
A('s_endpgm')

HB1, XBASE, WLDS = 4224, 8448, 13056
kernel_begin(A, 'conv_kernel')
A('s_cmp_ge_u32 s2, 288')
A('s_cbranch_scc1 conv_done')
A('v_lshrrev_b32 v1, 6, v0')
A('s_nop 0')
A('v_readfirstlane_b32 s3, v1')
A('v_and_b32 v0, 63, v0')
A('s_lshl_b32 s4, s2, 2')
A('s_add_u32 s4, s4, s3')
A('s_cmp_ge_u32 s4, 576')
A('s_cselect_b32 s6, 1, 0')
A('s_mul_i32 s7, s6, 576')
A('s_sub_u32 s7, s4, s7')
A('s_mul_i32 s8, s6, 48')
A('s_add_u32 s10, s0, s8')
A('s_addc_u32 s11, s1, 0')
A('s_load_dwordx4 s[12:15], s[10:11], 32')
A('s_load_dwordx2 s[18:19], s[0:1], 112')
A(f's_mul_i32 s5, s3, {WLDS}')
A('v_lshlrev_b32 v1, 4, v0')
A('s_lshl_b32 s36, s7, 12')
A('s_add_u32 s37, s36, 4')
A('s_lshl_b32 s38, s4, 12')
A('s_add_u32 s39, s38, 2048')
A('s_lshl_b32 s40, s7, 1')
A('s_and_b32 s41, s40, 2')
A('s_and_b32 s40, s40, 0xfffffffc')
A('s_waitcnt lgkmcnt(0)')
A('s_load_dword s42, s[12:13], s36')
A('s_load_dword s43, s[14:15], s40')
srd(A, 20, 12, TB); srd(A, 24, 18, XB)
A(f's_add_u32 s28, s18, {YOFF}')
A('s_addc_u32 s29, s19, 0')
srd(A, 28, 28, XB)
A('s_add_u32 m0, s5, 32')
A('s_nop 0')
for p in range(4): A(f'buffer_load_dwordx4 v1, s[20:23], s36 offen offset:{1024*p} lds')
A(f's_add_u32 m0, s5, {HB1+32}')
A('s_nop 0')
for p in range(4): A(f'buffer_load_dwordx4 v1, s[20:23], s37 offen offset:{1024*p} lds')
A(f's_add_u32 m0, s5, {XBASE}')
A('s_nop 0')
for p in range(2): A(f'buffer_load_dwordx4 v1, s[24:27], s38 offen offset:{1024*p} lds')
A(f's_add_u32 m0, s5, {XBASE+2304}')
A('s_nop 0')
for p in range(2): A(f'buffer_load_dwordx4 v1, s[24:27], s39 offen offset:{1024*p} lds')
A('v_and_b32 v2, 15, v0')
A('v_lshrrev_b32 v3, 4, v0')
A(f'v_mul_u32_u24 v4, 2304, v3')
A(f'v_lshl_add_u32 v4, v2, 4, v4')
A(f'v_add_u32 v4, {XBASE+2048}, v4')
A('v_and_b32 v5, 1, v0')
A('v_lshlrev_b32 v5, 4, v5')
A('v_bfe_u32 v6, v0, 1, 1')
A(f'v_mul_u32_u24 v6, {HB1}, v6')
A('v_add_u32 v5, v5, v6')
A('v_cmp_gt_u32 vcc, 32, v0')
A('s_nop 1')
A('v_cndmask_b32 v4, v5, v4, vcc')
A('v_add_u32 v4, s5, v4')
for i in range(4): A(f'v_mov_b32 v{8+i}, 0')
A('ds_write_b128 v4, v[8:11]')
A('s_waitcnt lgkmcnt(0)')
A('s_lshl_b32 s41, s41, 3')
A('s_lshr_b32 s43, s43, s41')
A('s_lshl_b32 s43, s43, 16')
A('s_lshl_b32 s44, s42, 16')
A('s_and_b32 s42, s42, 0xffff0000')
A('v_mov_b32 v8, s44')
A('v_add_f32 v8, s43, v8')
A('v_mov_b32 v9, s42')
A('v_cvt_pk_bf16_f32 v8, v8, v9')
A('v_mov_b32 v9, s5')
A(f'ds_write_b32 v9, v8 offset:{HB1+28}')
A('v_bfe_u32 v6, v0, 2, 2')
A('v_and_b32 v7, 3, v0')
A('v_add_u32 v10, 1, v6')
A('v_lshrrev_b32 v10, 1, v10')
A('v_add_u32 v10, v10, v7')
A('v_lshl_add_u32 v10, v3, 2, v10')
A('v_lshlrev_b32 v10, 3, v10')
A('v_and_b32 v6, 1, v6')
A('v_xor_b32 v6, 1, v6')
A(f'v_mul_u32_u24 v6, {HB1}, v6')
A('v_add3_u32 v5, v10, v6, s5')
A('v_sub_u32 v6, v3, v2')
A('v_add_u32 v6, 15, v6')
A('v_lshlrev_b32 v6, 4, v6')
A(f's_add_u32 s45, s5, {XBASE}')
A('v_add_u32 v6, s45, v6')
A('v_subrev_u32 v7, 16, v0')
A('v_add_u32 v10, 47, v0')
A('v_cmp_gt_u32 vcc, 16, v0')
A('s_nop 1')
A('v_cndmask_b32 v7, v7, v10, vcc')
A('v_mov_b32 v10, 63')
A('v_cmp_eq_u32 vcc, 0, v0')
A('s_nop 1')
A('v_cndmask_b32 v7, v7, v10, vcc')
A('v_lshlrev_b32 v7, 2, v7')
A('v_cmp_eq_u32 vcc, 63, v0')
A('s_nop 1')
A('v_cndmask_b32 v4, 0, -1, vcc')
A('v_lshlrev_b32 v12, 5, v2')
A('v_lshl_add_u32 v12, v3, 3, v12')
A('s_waitcnt vmcnt(0)')
A('ds_write_b32 v9, v8 offset:32')
AF, ACC, BF = 16, 144, 208
def acc(ph, c): return ACC + 32*ph + 4*c
for i in range(32):
    for hh in range(2):
        A(f'ds_read_b64_tr_b16 v[{AF+4*i+2*hh}:{AF+4*i+2*hh+1}], v5 offset:{128*i+16*hh}')
    if i % 4 == 3: A('s_waitcnt lgkmcnt(0)')
steps = [(d, rho, ph) for d in range(8) for rho in range(4) for ph in range(2)]
NB = 8
def bread(k):
    d, rho, ph = steps[k]
    b = BF + 4*(k % NB)
    A(f'ds_read_b128 v[{b}:{b+3}], v6 offset:{ph*2304+1792-256*d+64*rho}')
PRE = 4
for k in range(PRE): bread(k)
for k, (d, rho, ph) in enumerate(steps):
    if k + PRE < len(steps):
        bread(k+PRE); A(f's_waitcnt lgkmcnt({PRE})')
    else:
        A(f's_waitcnt lgkmcnt({len(steps)-1-k})')
    b = BF + 4*(k % NB)
    for q in range(8-d):
        ac = acc(ph, d+q); af = AF + 4*(4*q+rho)
        src = '0' if (d == 0 and rho == 0) else f'v[{ac}:{ac+3}]'
        A(f'v_mfma_f32_16x16x32_bf16 v[{ac}:{ac+3}], v[{af}:{af+3}], v[{b}:{b+3}], {src}')
A('s_nop 15')
T = 16
for c in range(8):
    z0, z1 = acc(0, c), acc(1, c)
    if c == 0: A(f'v_bfi_b32 v{T+c}, v4, 0, v{z1+3}')
    else: A(f'v_bfi_b32 v{T+c}, v4, v{acc(1,c-1)+3}, v{z1+3}')
    A(f'ds_bpermute_b32 v{T+c}, v7, v{T+c}')
for c in range(8):
    z0, z1 = acc(0, c), acc(1, c)
    for r in range(1, 4): A(f'v_add_f32 v{z0+r}, v{z0+r}, v{z1+r-1}')
    A(f's_waitcnt lgkmcnt({7-c})')
    A(f'v_add_f32 v{z0}, v{z0}, v{T+c}')
    A(f'v_cvt_pk_bf16_f32 v{32+2*c}, v{z0}, v{z0+1}')
    A(f'v_cvt_pk_bf16_f32 v{33+2*c}, v{z0+2}, v{z0+3}')
    A(f'buffer_store_dwordx2 v[{32+2*c}:{33+2*c}], v12, s[28:31], s38 offen offset:{512*c}')
A.label('conv_done')
A('s_endpgm')

kernel_begin(A, 'gate_kernel')
A('s_cmp_ge_u32 s2, 144')
A('s_cbranch_scc1 gate_done')
tile_decode(A)
A('s_mul_i32 s8, s6, 48')
A('s_add_u32 s10, s0, s8')
A('s_addc_u32 s11, s1, 0')
A('s_load_dwordx2 s[12:13], s[10:11], 0')
A('s_load_dwordx2 s[14:15], s[0:1], 96')
A('s_load_dwordx2 s[18:19], s[0:1], 112')
A('v_and_b32 v1, 7, v0')
A('v_lshrrev_b32 v2, 3, v0')
A('s_lshl_b32 s8, s4, 6')
A('v_lshl_add_u32 v3, v2, 3, s8')
A('s_movk_i32 s9, 1152')
A('v_mul_lo_u32 v4, v3, s9')
A('s_lshl_b32 s8, s7, 7')
A('v_lshl_add_u32 v5, v1, 4, s8')
A('v_add_u32 v6, v4, v5')
A('s_lshl_b32 s8, s5, 7')
A('v_lshl_add_u32 v5, v1, 4, s8')
A('v_lshl_add_u32 v7, v4, 1, v5')
A('s_mul_i32 s8, s5, 64*4096')
A('v_lshl_add_u32 v8, v1, 15, s8')
A('v_lshl_add_u32 v8, v3, 1, v8')
A('s_waitcnt lgkmcnt(0)')
srd(A, 20, 12, TB); srd(A, 24, 14, 2*TB)
A(f's_add_u32 s28, s18, {YOFF}')
A('s_addc_u32 s29, s19, 0')
srd(A, 28, 28, XB)
for q in range(8):
    A(f's_mov_b32 s{36+q}, {4096*q}')
    A(f's_mov_b32 s{44+q}, {1152*q}')
    A(f's_mov_b32 s{52+q}, {2304*q}')
Q0, Y0, O0 = 12, 44, 76
for i in range(8):
    A(f'buffer_load_dwordx4 v[{Q0+4*i}:{Q0+4*i+3}], v6, s[20:23], s{44+i} offen')
for j in range(8):
    A(f'buffer_load_dwordx4 v[{Y0+4*j}:{Y0+4*j+3}], v8, s[28:31], s{36+j} offen')
A('s_waitcnt vmcnt(0)')
for i in range(8):
    for p in range(4):
        unpack(A, 9, Y0+4*(2*p)+i//2, i % 2)
        unpack(A, 10, Q0+4*i+p, 0)
        A('v_mul_f32 v9, v9, v10')
        unpack(A, 10, Y0+4*(2*p+1)+i//2, i % 2)
        unpack(A, 11, Q0+4*i+p, 1)
        A('v_mul_f32 v10, v10, v11')
        A(f'v_cvt_pk_bf16_f32 v{O0+4*i+p}, v9, v10')
    A(f'buffer_store_dwordx4 v[{O0+4*i}:{O0+4*i+3}], v7, s[24:27], s{52+i} offen')
A.label('gate_done')
A('s_endpgm')

A.raw('.section .rodata,"a"')
A.raw(kernel_desc('kv_kernel', 176))
A.raw(kernel_desc('conv_kernel', 240))
A.raw(kernel_desc('gate_kernel', 112))
out = sys.argv[1] if len(sys.argv) > 1 else 'concat_heads__ssm_conv_h3__ssm_conv_h3__prompt.s'
open(out, 'w').write(A.text())
```
